```python
import torch

def _softmax(x, axis=-1):
    return torch.softmax(x, dim=axis)
def _gelu(x):
    return torch.nn.functional.gelu(x, approximate="tanh")
def _silu(x):
    return torch.nn.functional.silu(x)
def _sigmoid(x):
    return torch.sigmoid(x)
def _layernorm(x, axis=-1, eps=1e-5):
    m = x.mean(dim=axis, keepdim=True)
    v = x.var(dim=axis, keepdim=True, unbiased=False)
    return (x - m) / torch.sqrt(v + eps)
def _scatter_add(tgt, idx, src, axis=0):
    return tgt.clone().index_add_(axis, idx, src)
def _segment_sum(src, seg, n):
    out = torch.zeros((n,) + src.shape[1:], dtype=src.dtype)
    return out.index_add_(0, seg, src)
def _pad(x, pw):
    flat = tuple(v for pair in reversed(pw) for v in pair)
    return torch.nn.functional.pad(x, flat)

kernel_name = 'sequential_preLN__softmax_full_mha__glu_gated_glu__prompt'

def setup_inputs():

    _w = (lambda a: (lambda t: t.to(torch.bfloat16) if t.is_floating_point() else t)(torch.as_tensor(a)))
    def _A_setup():
        B, S, D = 1, 2048, 640
        return {
            "x": _w((lambda *s: torch.randn(*s, dtype=torch.bfloat16) * 0.05)(B, S, D)),
            "wqkv": _w((lambda *s: torch.randn(*s, dtype=torch.bfloat16) * 0.05)(D, 3 * D)),
            "wo": _w((lambda *s: torch.randn(*s, dtype=torch.bfloat16) * 0.05)(D, D)),
        }
    _A_in = _A_setup()

    def _B_setup():
        B, S, D, F = 1, 2048, 640, 1536
        return {
            "x": _w((lambda *s: torch.randn(*s, dtype=torch.bfloat16) * 0.05)(B, S, D)),
            "w_gate": _w((lambda *s: torch.randn(*s, dtype=torch.bfloat16) * 0.05)(D, F)),
            "w_up": _w((lambda *s: torch.randn(*s, dtype=torch.bfloat16) * 0.05)(D, F)),
            "w_down": _w((lambda *s: torch.randn(*s, dtype=torch.bfloat16) * 0.05)(F, D)),
        }
    _B_in = _B_setup()

    return {
        "A_x": _A_in["x"],
        "A_wqkv": _A_in["wqkv"],
        "A_wo": _A_in["wo"],
        "B_x": _B_in["x"],
        "B_w_gate": _B_in["w_gate"],
        "B_w_up": _B_in["w_up"],
        "B_w_down": _B_in["w_down"],
    }

def reference(A_x, A_wqkv, A_wo, B_x, B_w_gate, B_w_up, B_w_down):
    def _A_ref(x, wqkv, wo):
        B, S, D = x.shape
        H = 32; Dh = D // H
        qkv = (lambda x, *d: x.permute(*d))((x @ wqkv).reshape(B, S, 3, H, Dh), 2, 0, 3, 1, 4)
        q, k, v = qkv[0], qkv[1], qkv[2]
        scale = Dh ** -0.5
        scores = torch.einsum("bhqd,bhkd->bhqk", q, k) * scale
        p = _softmax(scores, axis=-1)
        o = torch.einsum("bhqk,bhkd->bhqd", p, v)
        return (lambda x, *d: x.permute(*d))(o, 0, 2, 1, 3).reshape(B, S, D) @ wo

    def _B_ref(x, w_gate, w_up, w_down):
        g = torch.einsum("bsd,df->bsf", x, w_gate)
        u = torch.einsum("bsd,df->bsf", x, w_up)
        h = _sigmoid(g) * u
        return torch.einsum("bsf,fd->bsd", h, w_down)

    x = A_x
    h = x + _A_ref(_layernorm(x, axis=-1), A_wqkv, A_wo)
    h2 = h + _B_ref(_layernorm(h, axis=-1), B_w_gate, B_w_up, B_w_down)
    return h2
```

```python
import math, struct, sys

NAME = "sequential_preLN__softmax_full_mha__glu_gated_glu__prompt"
S, D, H, DH, F = 2048, 640, 32, 20, 1536
ACT = S * D * 2
WS_Q, WS_K, WS_V, WS_O, WS_H, WS_HH = 0, ACT, 2 * ACT, 3 * ACT, 4 * ACT, 5 * ACT
HH_BYTES = S * F * 2
HEAD_BYTES = 64 * 1280
KA_X, KA_WQKV, KA_WO, KA_BX, KA_WG, KA_WU, KA_WD, KA_OUT, KA_DBG, KA_WS = [8 * i for i in range(10)]

def f32bits(x):
    return struct.unpack("<I", struct.pack("<f", x))[0]

class K:
    def __init__(self, name, grid, block, lds, nvgpr, nsgpr=96):
        self.name, self.grid, self.block, self.lds = name, grid, block, lds
        self.nvgpr, self.nsgpr = nvgpr, nsgpr
        self.l = []
    def __call__(self, s):
        for line in s.strip("\n").split("\n"):
            line = line.strip()
            if not line: continue
            self.l.append(line if line.endswith(":") else "    " + line)
    def label(self, s): self.l.append(f"{self.name}_{s}:")
    def L(self, s): return f"{self.name}_{s}"
    def srd(self, s, base, off, size):
        if off:
            self(f"s_add_u32 s{s}, s{base}, {off}\ns_addc_u32 s{s+1}, s{base+1}, 0")
        else:
            self(f"s_mov_b32 s{s}, s{base}\ns_mov_b32 s{s+1}, s{base+1}")
        self(f"s_mov_b32 s{s+2}, {size}\ns_mov_b32 s{s+3}, 0x00020000")
    def text(self):
        return (f".globl {self.name}\n.p2align 8\n.type {self.name},@function\n{self.name}:\n"
                + "\n".join(self.l) + "\n")
    def desc(self):
        nv = (self.nvgpr + 3) // 4 * 4
        return f""".p2align 6
.amdhsa_kernel {self.name}
  .amdhsa_next_free_vgpr {nv}
  .amdhsa_next_free_sgpr {self.nsgpr}
  .amdhsa_accum_offset {nv}
  .amdhsa_group_segment_fixed_size 0
  .amdhsa_kernarg_size 80
  .amdhsa_user_sgpr_count 2
  .amdhsa_user_sgpr_kernarg_segment_ptr 1
  .amdhsa_system_sgpr_workgroup_id_x 1
.end_amdhsa_kernel
"""

def vr(b, n): return f"v[{b}:{b+n-1}]" if n > 1 else f"v{b}"

def interleave(main, fill):
    out = []
    n, m = len(main), len(fill)
    done = 0
    for i, x in enumerate(main):
        out.append(x)
        upto = (i + 1) * m // n
        out += fill[done:upto]
        done = upto
    return out

def ln_gemm(mode):
    qkv = mode == "qkv"
    R = 4 if qkv else 3
    SA = 16384
    SB = 16384 if qkv else 24576 + 64
    UPOFF = 12288 + 32
    ABASE, BBASE = 0, R * SA
    STAT = (BBASE + R * SB + 1023) // 1024 * 1024
    LDS = STAT + 1024
    NST = 10
    NF = 2 if qkv else 3
    k = K("qkv_kernel" if qkv else "glu_kernel", 256, 512, LDS, 168 if not qkv else 136)
    k("s_cmp_ge_u32 s2, 256")
    k(f"s_cbranch_scc1 {k.L('end')}")
    if qkv:
        k(f"s_load_dwordx4 s[4:7], s[0:1], {KA_X}")
    else:
        k(f"s_load_dwordx4 s[4:7], s[0:1], {KA_WG}")
    k(f"s_load_dwordx2 s[8:9], s[0:1], {KA_WS}")
    k("s_and_b32 s10, s2, 7\ns_lshr_b32 s11, s2, 3")
    if qkv:
        k("""s_lshr_b32 s12, s10, 1
        s_lshl_b32 s12, s12, 2
        s_and_b32 s13, s11, 3
        s_add_u32 s12, s12, s13
        s_and_b32 s13, s10, 1
        s_lshl_b32 s13, s13, 3
        s_lshr_b32 s14, s11, 2
        s_add_u32 s13, s13, s14
        s_cmp_ge_u32 s13, 15""")
        k(f"s_cbranch_scc1 {k.L('end')}")
    else:
        k("""s_lshr_b32 s12, s10, 2
        s_lshl_b32 s12, s12, 3
        s_and_b32 s13, s11, 7
        s_add_u32 s12, s12, s13
        s_and_b32 s13, s10, 3
        s_lshl_b32 s13, s13, 2
        s_lshr_b32 s14, s11, 3
        s_add_u32 s13, s13, s14""")
    k("""v_lshrrev_b32 v1, 6, v0
    v_and_b32 v0, 63, v0
    s_nop 0
    v_readfirstlane_b32 s14, v1
    s_waitcnt lgkmcnt(0)""")
    if qkv:
        k.srd(16, 4, 0, ACT)
        k.srd(20, 6, 0, D * 3 * D * 2)
        k.srd(28, 8, WS_Q, 3 * ACT)
    else:
        k.srd(16, 8, WS_H, ACT)
        k.srd(20, 4, 0, D * F * 2)
        k.srd(24, 6, 0, D * F * 2)
        k.srd(28, 8, WS_HH, HH_BYTES)
    k("s_cmp_lt_u32 s14, 4")
    k(f"s_cbranch_scc1 {k.L('compute')}")
    k("s_sub_u32 s14, s14, 4")
    k("""v_lshrrev_b32 v1, 3, v0
    s_lshl_b32 s15, s12, 7
    s_lshl_b32 s32, s14, 5
    s_add_u32 s15, s15, s32
    v_add_u32 v1, s15, v1
    v_mul_u32_u24 v1, 1280, v1
    v_and_b32 v2, 7, v0
    v_lshrrev_b32 v3, 4, v0
    v_xor_b32 v2, v2, v3
    v_xor_b32 v3, 4, v2
    v_lshl_add_u32 v4, v2, 4, v1
    v_lshl_add_u32 v5, v3, 4, v1""")
    k(f"v_add_u32 v5, {10240-1024}, v5")
    k(f"v_add_u32 v6, {2*(10240-1024)}, v4")
    k(f"v_add_u32 v7, {2*(10240-1024)}, v5")
    if qkv:
        k("""v_lshrrev_b32 v1, 4, v0
        s_lshl_b32 s15, s14, 4
        v_add_u32 v2, s15, v1
        v_mul_u32_u24 v2, 3840, v2
        v_lshlrev_b32 v1, 2, v1
        v_and_b32 v3, 15, v0
        v_xor_b32 v3, v3, v1
        v_lshl_add_u32 v2, v3, 4, v2
        s_lshl_b32 s15, s13, 8
        v_add_u32 v8, s15, v2""")
        for j in range(1, 4):
            k(f"v_add_u32 v{8+j}, {j*(4*3840-1024)}, v8")
        nB = 4
        BST = 64 * 3840
    else:
        k("s_mul_i32 s15, s14, 16*3072\ns_mul_i32 s32, s13, 192\ns_add_u32 s15, s15, s32")
        for i in range(3):
            k(f"""v_add_u32 v1, {64*i}, v0
            v_mul_u32_u24 v2, 43691, v1
            v_lshrrev_b32 v2, 19, v2
            v_mul_u32_u24 v3, 12, v2
            v_sub_u32 v3, v1, v3
            v_mul_u32_u24 v2, 3072, v2
            v_lshl_add_u32 v2, v3, 4, v2
            v_add_u32 v2, s15, v2""")
            k(f"v_subrev_u32 v{8+i}, {1024*i}, v2")
        nB = 6
        BST = 64 * 3072
    per = 4 + nB
    k(f"s_lshl_b32 s33, s14, 12")
    if qkv: k(f"s_add_u32 s34, s33, {BBASE}")
    else:   k(f"s_mul_i32 s34, s14, 3072\ns_add_u32 s34, s34, {BBASE}")
    def issue(st):
        slot = st % R
        k(f"s_add_u32 m0, s33, {ABASE + slot*SA}")
        k(f"s_mov_b32 s35, {st*128}")
        for j in range(4):
            k(f"buffer_load_dwordx4 v{4+j}, s[16:19], s35 offen offset:{1024*j} lds")
        k(f"s_add_u32 m0, s34, {slot*SB}")
        k(f"s_mov_b32 s35, {st*BST}")
        if qkv:
            for j in range(4):
                k(f"buffer_load_dwordx4 v{8+j}, s[20:23], s35 offen offset:{1024*j} lds")
        else:
            for j in range(3):
                k(f"buffer_load_dwordx4 v{8+j}, s[20:23], s35 offen offset:{1024*j} lds")
            k(f"s_add_u32 m0, s34, {slot*SB + UPOFF}")
            k("s_nop 0")
            for j in range(3):
                k(f"buffer_load_dwordx4 v{8+j}, s[24:27], s35 offen offset:{1024*j} lds")
    for st in range(R): issue(st)
    issued = R
    for i in range(NST):
        k(f"s_waitcnt vmcnt({per * (issued - 1 - i)})")
        k("s_barrier")
        if i >= 1 and i + R - 1 < NST:
            issue(i + R - 1); issued += 1
    k("s_endpgm")
    k.label("compute")
    ACC = 0 + 8
    nacc = 2 * NF * 16
    XF = ACC + nacc
    WF = XF + 16
    AX = WF + 2 * NF * 4
    AW = AX + 8
    nAW = 2 if qkv else 1
    ST = AW + nAW
    ONE = ST + 2 + NF
    T0 = ONE + 1
    T0 = (T0 + 1) // 2 * 2
    acc = lambda s, f: ACC + 16 * (s * NF + f)
    xf = lambda b, s: XF + 8 * b + 4 * s
    wf = lambda b, f: WF + 4 * NF * b + 4 * f
    k("s_lshr_b32 s15, s14, 1\ns_and_b32 s14, s14, 1")
    k(f"""v_and_b32 v1, 31, v0
    v_lshlrev_b32 v1, 7, v1
    v_lshrrev_b32 v2, 5, v0
    v_bfe_u32 v3, v0, 1, 3
    v_xor_b32 v2, v2, v3
    s_lshl_b32 s32, s15, 13
    s_lshl_b32 s33, s14, 12
    s_add_u32 s32, s32, s33
    v_add_u32 v1, s32, v1""")
    for kk in range(4):
        k(f"v_xor_b32 v3, {2*kk}, v2")
        k(f"v_lshl_add_u32 v{AX+kk}, v3, 4, v1")
        k(f"v_xor_b32 v{AX+4+kk}, 4096, v{AX+kk}")
    k("""v_lshrrev_b32 v1, 5, v0
    v_bfe_u32 v2, v0, 2, 2
    v_lshl_add_u32 v1, v1, 3, v2""")
    if qkv:
        k(f"""v_lshlrev_b32 v1, 8, v1
        v_bfe_u32 v3, v0, 4, 1
        v_lshl_add_u32 v1, v3, 5, v1
        v_and_b32 v3, 3, v0
        v_lshl_add_u32 v1, v3, 3, v1
        v_add_u32 v1, {BBASE}, v1
        s_lshl_b32 s32, s14, 1
        v_xor_b32 v2, s32, v2
        v_lshl_add_u32 v{AW}, v2, 6, v1
        v_xor_b32 v{AW+1}, 64, v{AW}""")
        woff = lambda kk, t, f: kk * 4096 + t * 1024
        waddr = lambda f: AW + f
    else:
        k(f"""v_mul_u32_u24 v1, 192, v1
        v_bfe_u32 v3, v0, 4, 1
        v_mul_u32_u24 v3, {UPOFF}, v3
        v_add_u32 v1, v1, v3
        v_and_b32 v3, 3, v0
        v_lshrrev_b32 v2, 1, v3
        v_xor_b32 v3, v3, v2
        v_lshl_add_u32 v1, v3, 3, v1
        s_mul_i32 s32, s14, 96
        s_add_u32 s32, s32, {BBASE}
        v_add_u32 v{AW}, s32, v1""")
        woff = lambda kk, t, f: kk * 3072 + t * 768 + f * 32
        waddr = lambda f: AW
    for i in range(nacc): k(f"v_mov_b32 v{ACC+i}, 0")
    for i in range(8): k(f"v_mov_b32 v{xf(1,0)+i}, 0")
    for i in range(4 * NF): k(f"v_mov_b32 v{wf(1,0)+i}, 0")
    for i in range(2 + NF): k(f"v_mov_b32 v{ST+i}, 0")
    k(f"v_mov_b32 v{ONE}, 0x3f803f80")

    def reads(kk):
        b = kk & 1
        r = [f"ds_read_b128 {vr(xf(b,s),4)}, v{AX+4*s+kk}" for s in range(2)]
        for f in range(NF):
            for t in range(2):
                r.append(f"ds_read_b64_tr_b16 {vr(wf(b,f)+2*t,2)}, v{waddr(f)} offset:{woff(kk,t,f)}")
        return r
    nrd = 2 + 2 * NF
    def mfmas(b, vtype):
        r = []
        for s in range(2):
            for f in range(NF):
                a, bb = (xf(b,s), wf(b,f)) if vtype else (wf(b,f), xf(b,s))
                r.append(f"v_mfma_f32_32x32x16_bf16 {vr(acc(s,f),16)}, {vr(a,4)}, {vr(bb,4)}, {vr(acc(s,f),16)}")
        return r
    def dots(b):
        r = []
        for i in range(4):
            r.append(f"v_dot2c_f32_bf16 v{ST}, v{xf(b,0)+i}, v{ONE}")
            r.append(f"v_dot2c_f32_bf16 v{ST+1}, v{xf(b,0)+i}, v{xf(b,0)+i}")
            for f in range(NF):
                r.append(f"v_dot2c_f32_bf16 v{ST+2+f}, v{wf(b,f)+i}, v{ONE}")
        return r
    def mainloop(tag, vtype):
        k("s_mov_b32 s36, 0")
        k("s_mov_b32 s37, 0")
        k(f"s_mov_b32 s48, {SA}\ns_mov_b32 s49, {SB}")
        k.label("loop" + tag)
        k("s_waitcnt lgkmcnt(0)")
        k("s_barrier")
        k(f"""s_add_u32 s37, s37, 1
        s_cmp_eq_u32 s37, {R}
        s_cselect_b32 s38, {(-(R-1)*SA) & 0xffffffff}, s48
        s_cselect_b32 s39, {(-(R-1)*SB) & 0xffffffff}, s49
        s_cselect_b32 s37, 0, s37""")
        for x in reads(0): k(x)
        for x in interleave(mfmas(1, vtype), dots(1)): k(x)
        for kk in range(3):
            for x in reads(kk + 1): k(x)
            k(f"s_waitcnt lgkmcnt({nrd})")
            fill = dots(kk & 1)
            if kk == 2:
                fill = fill + [f"v_add_u32 v{AX+i}, s38, v{AX+i}" for i in range(8)] + \
                       [f"v_add_u32 v{AW+i}, s39, v{AW+i}" for i in range(nAW)]
            for x in interleave(mfmas(kk & 1, vtype), fill): k(x)
        k(f"""s_add_u32 s36, s36, 1
        s_cmp_lt_u32 s36, {NST}
        s_cbranch_scc1 {k.L('loop' + tag)}""")
        k("s_waitcnt lgkmcnt(0)")
        for x in interleave(mfmas(1, vtype), dots(1)): k(x)

    def stats(vtype):
        k("s_nop 2")
        for i in range(2 + NF): k(f"v_mov_b32 v{T0+i}, v{ST+i}")
        k("s_nop 1")
        for i in range(2 + NF): k(f"v_permlane32_swap_b32 v{ST+i}, v{T0+i}")
        k("s_nop 1")
        for i in range(2 + NF): k(f"v_add_f32 v{ST+i}, v{ST+i}, v{T0+i}")
        k(f"""v_mul_f32 v{ST}, {f32bits(1.0/D):#x}, v{ST}
        v_mul_f32 v{ST+1}, {f32bits(1.0/D):#x}, v{ST+1}
        v_fma_f32 v{ST+1}, -v{ST}, v{ST}, v{ST+1}
        v_max_f32 v{ST+1}, 0, v{ST+1}
        v_add_f32 v{ST+1}, {f32bits(1e-5):#x}, v{ST+1}
        v_rsq_f32 v{ST+1}, v{ST+1}""")
        k(f"""v_and_b32 v1, 31, v0
        s_lshl_b32 s32, s15, 6
        s_lshl_b32 s33, s14, 5
        s_add_u32 s32, s32, s33
        v_add_u32 v1, s32, v1
        v_lshlrev_b32 v1, 2, v1
        v_add_u32 v1, {STAT}, v1
        ds_write_b32 v1, v{ST}
        ds_write_b32 v1, v{ST+1} offset:512
        v_xor_b32 v1, 128, v1
        s_waitcnt lgkmcnt(0)
        s_barrier
        ds_read_b32 v2, v1
        ds_read_b32 v3, v1 offset:512""")
        k(f"v_cmp_gt_u32 vcc, 32, v0")
        for f in range(NF):
            c = ST + 2 + f
            k(f"""v_cvt_pk_bf16_f32 v{T0}, v{c}, v{c}
            v_and_b32 v{T0}, 0xffff0000, v{T0}
            v_sub_f32 v{T0}, v{c}, v{T0}
            v_cvt_pk_bf16_f32 v{wf(0,f)}, v{c}, v{T0}
            v_cvt_pk_bf16_f32 v{wf(0,f)+1}, v{c}, 0
            v_cndmask_b32 v{wf(0,f)}, 0, v{wf(0,f)}, vcc
            v_cndmask_b32 v{wf(0,f)+1}, 0, v{wf(0,f)+1}, vcc""")
        k("s_waitcnt lgkmcnt(0)")
        for s, m in ((0, ST), (1, 2)):
            k(f"""v_sub_f32 v{T0+1}, 0, v{m}
            v_cvt_pk_bf16_f32 v{xf(0,s)}, v{T0+1}, v{T0+1}
            v_and_b32 v{T0}, 0xffff0000, v{xf(0,s)}
            v_sub_f32 v{T0}, v{T0+1}, v{T0}
            v_cvt_pk_bf16_f32 v{xf(0,s)+1}, v{T0}, 0""")
        k("s_nop 1")
        for s in range(2):
            for f in range(NF):
                a, bb = (xf(0,s), wf(0,f)) if vtype else (wf(0,f), xf(0,s))
                k(f"v_mfma_f32_32x32x8_bf16 {vr(acc(s,f),16)}, {vr(a,2)}, {vr(bb,2)}, {vr(acc(s,f),16)}")

    if qkv:
        k(f"s_cmp_ge_u32 s13, 10\ns_cbranch_scc1 {k.L('vtype')}")
        SAD = T0 + 8
        k("""s_cmp_ge_u32 s13, 5
        s_cselect_b32 s40, 5, 0
        s_sub_u32 s40, s13, s40""")
        k(f"""s_cmp_ge_u32 s13, 5
        s_cselect_b32 s41, {ACT}, 0
        s_cselect_b32 s42, 1.0, {f32bits(DH ** -0.5 * math.log2(math.e)):#x}""")
        k(f"""s_lshl_b32 s43, s12, 2
        s_lshl_b32 s32, s15, 1
        s_add_u32 s43, s43, s32
        s_add_u32 s44, s43, s14
        s_xor_b32 s45, s44, 1
        s_mul_i32 s44, s44, 1280
        s_mul_i32 s45, s45, 1280
        s_add_u32 s44, s44, s41
        s_add_u32 s45, s45, s41
        s_lshl_b32 s32, s40, 5
        s_lshl_b32 s33, s14, 4
        s_add_u32 s32, s32, s33
        v_lshrrev_b32 v1, 5, v0
        v_add_u32 v1, s32, v1
        v_and_b32 v2, 31, v0""")
        for f in range(2):
            for rq in range(4):
                d = SAD + 4 * f + rq
                k(f"""v_add_u32 v3, {8*f + 2*rq}, v1
                v_mul_u32_u24 v4, 205, v3
                v_lshrrev_b32 v4, 10, v4
                v_mul_u32_u24 v5, 5, v4
                v_sub_u32 v5, v3, v5
                v_mul_u32_u24 v4, {HEAD_BYTES}, v4
                v_lshrrev_b32 v6, 1, v5
                v_lshlrev_b32 v6, 9, v6
                v_and_b32 v7, 1, v5
                v_lshl_add_u32 v6, v7, 3, v6
                v_add_u32 v4, v4, v6
                v_cmp_eq_u32 vcc, 4, v5
                v_lshlrev_b32 v6, 4, v2
                v_lshlrev_b32 v7, 3, v2
                v_cndmask_b32 v6, v6, v7, vcc
                v_add_u32 v{d}, v4, v6""")
        mainloop("qk", False)
        stats(False)
        k(f"v_mul_f32 v{ST+1}, s42, v{ST+1}\nv_mul_f32 v3, s42, v3")
        k("s_nop 7")
        for s in range(2):
            rs = ST + 1 if s == 0 else 3
            for f in range(2):
                a = acc(s, f)
                if s == 0 and f == 0: k("s_nop 3")
                for i in range(16): k(f"v_mul_f32 v{a+i}, v{a+i}, v{rs}")
                for i in range(8): k(f"v_cvt_pk_bf16_f32 v{a+i}, v{a+2*i}, v{a+2*i+1}")
                for rq in range(4):
                    k(f"buffer_store_dwordx2 {vr(a+2*rq,2)}, v{SAD+4*f+rq}, s[28:31], s{44+s} offen")
        k("s_endpgm")
        k.label("vtype")
        k(f"""s_sub_u32 s40, s13, 10
        s_lshl_b32 s43, s12, 2
        s_lshl_b32 s32, s15, 1
        s_add_u32 s43, s43, s32
        s_add_u32 s44, s43, s14
        s_xor_b32 s45, s44, 1
        s_mul_i32 s44, s44, 1280
        s_mul_i32 s45, s45, 1280
        s_add_u32 s44, s44, {2*ACT}
        s_add_u32 s45, s45, {2*ACT}
        s_lshl_b32 s32, s40, 7
        s_lshl_b32 s33, s14, 6
        s_add_u32 s32, s32, s33
        v_and_b32 v1, 31, v0
        v_add_u32 v1, s32, v1
        v_lshrrev_b32 v2, 5, v0
        v_mul_u32_u24 v2, 320, v2""")
        for f in range(2):
            k(f"""v_add_u32 v3, {32*f}, v1
            v_mul_u32_u24 v4, 3277, v3
            v_lshrrev_b32 v4, 16, v4
            v_mul_u32_u24 v5, 20, v4
            v_sub_u32 v5, v3, v5
            v_mul_u32_u24 v4, {HEAD_BYTES}, v4
            v_lshl_add_u32 v4, v5, 4, v4
            v_add_u32 v{SAD+f}, v4, v2""")
        mainloop("v", True)
        stats(True)
        RSR = XF
        k(f"""v_lshrrev_b32 v1, 5, v0
        v_lshlrev_b32 v1, 4, v1
        s_lshl_b32 s32, s15, 8
        s_lshl_b32 s33, s14, 7
        s_add_u32 s32, s32, s33
        s_add_u32 s32, s32, {STAT + 512}
        v_add_u32 v1, s32, v1
        v_xor_b32 v2, 128, v1""")
        k("s_nop 7")
        for s in range(2):
            for q in range(4):
                k(f"ds_read_b128 {vr(RSR+16*s+4*q,4)}, v{1+s} offset:{32*q}")
        k("s_waitcnt lgkmcnt(0)")
        for s in range(2):
            for f in range(2):
                a = acc(s, f)
                for i in range(16): k(f"v_mul_f32 v{a+i}, v{a+i}, v{RSR+16*s+i}")
                for i in range(8): k(f"v_cvt_pk_bf16_f32 v{a+i}, v{a+2*i}, v{a+2*i+1}")
                for mf in range(2):
                    k(f"buffer_store_dwordx4 {vr(a+4*mf,4)}, v{SAD+f}, s[28:31], s{44+s} offen offset:{640*mf}")
        k("s_endpgm")
        k.nvgpr = SAD + 8
    else:
        SAD = T0 + 8
        k(f"""s_lshl_b32 s32, s12, 7
        s_lshl_b32 s33, s15, 6
        s_add_u32 s32, s32, s33
        s_lshl_b32 s33, s14, 5
        s_add_u32 s32, s32, s33
        v_and_b32 v1, 31, v0
        v_add_u32 v1, s32, v1
        v_xor_b32 v2, 32, v1
        v_mul_u32_u24 v1, 3072, v1
        v_mul_u32_u24 v2, 3072, v2
        s_mul_i32 s32, s13, 192
        s_mul_i32 s33, s14, 96
        s_add_u32 s32, s32, s33
        v_lshrrev_b32 v3, 5, v0
        v_lshlrev_b32 v3, 4, v3
        v_add_u32 v3, s32, v3
        v_add_u32 v{SAD}, v1, v3
        v_add_u32 v{SAD+1}, v2, v3""")
        mainloop("g", False)
        stats(False)
        GS, SD = T0 + 2, T0 + 4
        for s, rs in ((0, ST + 1), (1, 3)):
            k(f"v_mul_f32 v{GS+s}, {f32bits(-math.log2(math.e)):#x}, v{rs}")
            k(f"v_rcp_f32 v{SD+s}, v{rs}")
        k("s_nop 7")
        for s in range(2):
            for f in range(3):
                a = acc(s, f)
                if s == 0 and f == 0: k("s_nop 3")
                for i in range(8): k(f"v_mul_f32 v{a+i}, v{a+i}, v{GS+s}")
                for i in range(8): k(f"v_exp_f32 v{a+i}, v{a+i}")
                for i in range(8): k(f"v_fma_f32 v{a+i}, v{a+i}, v{SD+s}, v{SD+s}")
                for i in range(8): k(f"v_rcp_f32 v{a+i}, v{a+i}")
                for i in range(8): k(f"v_mul_f32 v{a+i}, v{a+i}, v{a+8+i}")
                for i in range(4): k(f"v_cvt_pk_bf16_f32 v{a+8+i}, v{a+2*i}, v{a+2*i+1}")
                k("s_nop 1")
                k(f"v_permlane32_swap_b32 v{a+8}, v{a+10}")
                k(f"v_permlane32_swap_b32 v{a+9}, v{a+11}")
                k(f"buffer_store_dwordx4 {vr(a+8,4)}, v{SAD+s}, s[28:31], 0 offen offset:{32*f}")
        k("s_endpgm")
        k.nvgpr = SAD + 2
    k.label("end")
    k("s_endpgm")
    return k

def attention():
    k = K("attn_kernel", 256, 512, 8 * 64 * 16 * 4, 160)
    k("s_cmp_ge_u32 s2, 256")
    k(f"s_cbranch_scc1 {k.L('end')}")
    k(f"s_load_dwordx2 s[8:9], s[0:1], {KA_WS}")
    k("""s_and_b32 s10, s2, 7
    s_lshr_b32 s11, s2, 3
    s_lshl_b32 s12, s10, 2
    s_lshr_b32 s13, s11, 3
    s_add_u32 s12, s12, s13
    s_and_b32 s13, s11, 7
    v_lshrrev_b32 v1, 6, v0
    v_and_b32 v0, 63, v0
    s_nop 0
    v_readfirstlane_b32 s14, v1
    s_and_b32 s15, s14, 3
    s_lshr_b32 s14, s14, 2""")
    O0, S0, P0, Q0, KV0 = 8, 40, 72, 88, 100
    o = lambda q: O0 + 16 * q
    sb = lambda b: S0 + 16 * b
    pb = lambda b: P0 + 8 * b
    q1 = lambda q: Q0 + 6 * q
    q2 = lambda q: Q0 + 6 * q + 4
    k1 = lambda b: KV0 + 14 * b
    k2 = lambda b: KV0 + 14 * b + 4
    v1 = lambda b: KV0 + 14 * b + 6
    v2 = lambda b: KV0 + 14 * b + 10
    M0_ = KV0 + 28
    T = M0_ + 2
    A16, A8, AV = 2, 3, 4
    k(f"""v_lshlrev_b32 v{A16}, 4, v0
    v_lshlrev_b32 v{A8}, 3, v0
    v_and_b32 v5, 31, v0
    v_lshrrev_b32 v1, 2, v5""")
    k(f"""v_lshlrev_b32 v1, 2, v1
    v_mov_b32 v7, 0x24130
    v_lshrrev_b32 v7, v1, v7
    v_and_b32 v7, 7, v7
    v_and_b32 v6, 3, v5
    v_lshl_add_u32 v7, v7, 2, v6
    v_lshlrev_b32 v7, 4, v7
    v_lshrrev_b32 v6, 5, v0
    v_mul_u32_u24 v6, 320, v6
    v_add_u32 v{AV}, v7, v6""")
    k("s_waitcnt lgkmcnt(0)")
    k.srd(16, 8, WS_Q, 3 * ACT)
    k.srd(28, 8, WS_O, ACT)
    k(f"""s_mul_i32 s20, s12, {HEAD_BYTES}
    s_lshl_b32 s21, s13, 3
    s_lshl_b32 s22, s15, 1
    s_add_u32 s21, s21, s22
    s_mul_i32 s21, s21, 1280
    s_add_u32 s21, s21, s20
    s_mul_i32 s22, s14, {32*1280}
    s_add_u32 s22, s22, s20
    s_add_u32 s23, s22, {2*ACT}
    s_add_u32 s22, s22, {ACT}""")
    k("""s_mov_b32 s40, -1
    s_mov_b32 s41, 0
    s_mov_b32 s42, 0x000fffff
    s_mov_b32 s43, 0x000fffff
    s_mov_b32 s46, 0""")
    for b in range(2):
        k(f"v_mov_b32 v{k2(b)}, 0x3f80\nv_mov_b32 v{k2(b)+1}, 0")
    k(f"""v_and_b32 v5, 31, v0
    v_cmp_eq_u32 vcc, 20, v5
    v_cmp_eq_u32 s[44:45], 24, v5
    s_nop 3
    s_or_b64 vcc, vcc, s[44:45]
    v_mov_b32 v6, 0x3f803f80
    s_nop 1
    v_cndmask_b32 v6, 0, v6, vcc""")
    for b in range(2):
        for i in range(8): k(f"v_mov_b32 v{v1(b)+i}, v6")
    for q in range(2):
        k(f"v_mov_b32 v{q2(q)}, 0\nv_mov_b32 v{q2(q)+1}, 0")
    def ldK(b, soff, off):
        return ["s_mov_b64 exec, s[40:41]",
                f"buffer_load_dwordx2 {vr(k2(b),2)}, v{A8}, s[16:19], {soff} offen offset:{off+1024}",
                "s_mov_b64 exec, -1",
                f"buffer_load_dwordx4 {vr(k1(b),4)}, v{A16}, s[16:19], {soff} offen offset:{off}"]
    def ldV(b, soff, off):
        return ["s_mov_b64 exec, s[42:43]",
                f"buffer_load_dwordx4 {vr(v1(b),4)}, v{AV}, s[16:19], {soff} offen offset:{off}",
                f"buffer_load_dwordx4 {vr(v2(b),4)}, v{AV}, s[16:19], {soff} offen offset:{off+640}",
                "s_mov_b64 exec, -1"]
    def qk(b, q, dst):
        return [f"v_mfma_f32_32x32x16_bf16 {vr(dst,16)}, {vr(k1(b),4)}, {vr(q1(q),4)}, 0",
                f"v_mfma_f32_32x32x8_bf16 {vr(dst,16)}, {vr(k2(b),2)}, {vr(q2(q),2)}, {vr(dst,16)}"]
    def pv(b, q, p):
        return [f"v_mfma_f32_32x32x16_bf16 {vr(o(q),16)}, {vr(v1(b),4)}, {vr(p,4)}, {vr(o(q),16)}",
                f"v_mfma_f32_32x32x16_bf16 {vr(o(q),16)}, {vr(v2(b),4)}, {vr(p+4,4)}, {vr(o(q),16)}"]
    k("s_mov_b64 exec, s[40:41]")
    for q in range(2):
        k(f"buffer_load_dwordx2 {vr(q2(q),2)}, v{A8}, s[16:19], s21 offen offset:{1280*q+1024}")
    k("s_mov_b64 exec, -1")
    for q in range(2):
        k(f"buffer_load_dwordx4 {vr(q1(q),4)}, v{A16}, s[16:19], s21 offen offset:{1280*q}")
    for x in ldK(0, "s22", 0): k(x)
    k("s_waitcnt vmcnt(0)")
    for q in range(2):
        for x in qk(0, q, sb(q)): k(x)
    k("s_nop 15")
    def rowmax(q, first):
        s = sb(q)
        r = []
        if first:
            r.append(f"v_max3_f32 v{M0_+q}, v{s}, v{s+1}, v{s+2}")
            r.append(f"v_max_f32 v{M0_+q}, v{M0_+q}, v{s+15}")
            idx = range(3, 15, 2)
        else:
            idx = range(0, 16, 2)
        for i in idx: r.append(f"v_max3_f32 v{M0_+q}, v{M0_+q}, v{s+i}, v{s+i+1}")
        return r
    for q in range(2):
        for x in rowmax(q, True): k(x)
    k.label("setmax")
    for q in range(2):
        k(f"v_mov_b32 v{T+q}, v{M0_+q}")
    k("s_nop 1")
    for q in range(2):
        k(f"v_permlane32_swap_b32 v{M0_+q}, v{T+q}")
    k("s_nop 1")
    for q in range(2):
        k(f"""v_max_f32 v{M0_+q}, v{M0_+q}, v{T+q}
        v_sub_f32 v{T+q}, 0, v{M0_+q}
        v_cvt_pk_bf16_f32 v{T+q}, v{T+q}, 0
        v_lshlrev_b32 v{M0_+q}, 16, v{T+q}
        v_cndmask_b32 v{q2(q)}, v{T+q}, v{q2(q)}, s[40:41]""")
    for q in range(2):
        for i in range(16): k(f"v_mov_b32 v{o(q)+i}, 0")
    for i in range(8): k(f"v_mov_b32 v{pb(1)+i}, 0")
    k("s_mov_b32 s24, s22\ns_mov_b32 s25, s23")
    for x in ldK(0, "s24", 0) + ldV(1, "s25", 0) + ldK(1, "s24", 1280) + ldV(0, "s25", 0): k(x)
    k("s_waitcnt vmcnt(4)")
    for x in qk(0, 0, sb(0)): k(x)
    k("s_mov_b32 s26, 0")
    k("s_nop 7\ns_nop 3")
    k.label("loop")
    for j in range(4):
        t, q = j >> 1, j & 1
        s, p = sb(j & 1), pb(j & 1)
        ex = [f"v_exp_f32 v{s+i}, v{s+i}" for i in range(16)]
        cv = [f"v_cvt_pk_bf16_f32 v{p+i}, v{s+2*i}, v{s+2*i+1}" for i in range(8)]
        jn = j + 1
        qkn = qk((jn >> 1) & 1, jn & 1, sb(jn & 1))
        jp = (j - 1) & 3
        pvp = pv((jp >> 1) & 1, jp & 1, pb(jp & 1))
        seq = []
        if q == 1: seq.append("s_waitcnt vmcnt(4)")
        seq += [qkn[0]] + ex[0:4] + [cv[0]]
        seq += [qkn[1]] + ex[4:8] + [cv[1], cv[2]]
        seq += [pvp[0]] + ex[8:12] + [cv[3], cv[4]]
        seq += [pvp[1]] + ex[12:14]
        if q == 0:
            seq += ldK(t, "s24", 2560 + 0) if t == 0 else ldK(t, "s24", 2560 + 0)
            seq += ldV(t ^ 1, "s25", 1280)
            seq += ["s_add_u32 s24, s24, 1280", "s_add_u32 s25, s25, 1280"]
        seq += ex[14:16] + [cv[5], cv[6], cv[7]]
        for x in seq: k(x)
    k(f"""s_add_u32 s26, s26, 1
    s_cmp_lt_u32 s26, 16
    s_cbranch_scc1 {k.L('loop')}""")
    k("s_nop 1")
    for x in pv(1, 1, pb(1)): k(x)
    k("s_waitcnt vmcnt(0)")
    k("s_nop 15")
    LR = T + 2
    for q in range(2):
        k(f"v_cndmask_b32 v{LR+q}, v{o(q)+8}, v{o(q)+12}, s[40:41]")
    k(f"""s_mov_b32 s47, {f32bits(2.0**64):#x}
    v_cmp_ngt_f32 vcc, s47, v{LR}
    v_cmp_ngt_f32 s[44:45], s47, v{LR+1}
    s_nop 3
    s_or_b64 vcc, vcc, s[44:45]
    s_cbranch_scc0 {k.L('merge')}
    s_cmp_lg_u32 s46, 0
    s_cbranch_scc1 {k.L('merge')}""")
    k("s_mov_b32 s46, 1")
    for q in range(2):
        k(f"v_cndmask_b32 v{q2(q)}, 0, v{q2(q)}, s[40:41]")
        k(f"v_mov_b32 v{M0_+q}, 0xff800000")
    k("s_mov_b32 s24, s22\ns_mov_b32 s26, 0")
    k.label("maxloop")
    for x in ldK(0, "s24", 0): k(x)
    k("s_waitcnt vmcnt(0)")
    for q in range(2):
        for x in qk(0, q, sb(q)): k(x)
    k("s_nop 15")
    for q in range(2):
        for x in rowmax(q, False): k(x)
    k(f"""s_add_u32 s24, s24, 1280
    s_add_u32 s26, s26, 1
    s_cmp_lt_u32 s26, 32
    s_cbranch_scc1 {k.L('maxloop')}
    s_branch {k.L('setmax')}""")
    k.label("merge")
    k(f"""s_lshl_b32 s32, s14, 2
    s_add_u32 s32, s32, s15
    s_lshl_b32 s33, s32, 12
    s_xor_b32 s34, s33, {4*4096}
    v_add_u32 v5, s33, v{A16}
    v_add_u32 v6, s34, v{A16}
    s_cmp_eq_u32 s14, 0
    s_cbranch_scc1 {k.L('mrg0')}""")
    for i in range(12):
        k(f"v_swap_b32 v{o(0)+i}, v{o(1)+i}")
    k(f"v_swap_b32 v{LR}, v{LR+1}\nv_swap_b32 v{M0_}, v{M0_+1}")
    k.label("mrg0")
    k(f"v_mov_b32 v{o(1)+12}, v{LR+1}\nv_mov_b32 v{o(1)+13}, v{M0_+1}")
    k("s_nop 0")
    for i in range(4):
        k(f"ds_write_b128 v5, {vr(o(1)+4*i,4)} offset:{1024*i}")
    k("s_waitcnt lgkmcnt(0)\ns_barrier")
    for i in range(4):
        k(f"ds_read_b128 {vr(o(1)+4*i,4)}, v6 offset:{1024*i}")
    k(f"""s_lshl_b32 s32, s13, 8
    s_lshl_b32 s33, s15, 6
    s_add_u32 s32, s32, s33
    s_lshl_b32 s33, s14, 5
    s_add_u32 s32, s32, s33
    v_and_b32 v5, 31, v0
    v_add_u32 v5, s32, v5
    v_mul_u32_u24 v5, 1280, v5
    v_lshrrev_b32 v6, 5, v0
    v_mul_u32_u24 v6, 3, v6
    s_mul_i32 s33, s12, 5
    v_add_u32 v6, s33, v6""")
    SA_ = S0
    for i in range(3):
        k(f"""v_add_u32 v7, {i}, v6
        v_bfe_u32 v1, v7, 1, 1
        v_xor_b32 v7, v7, v1
        v_lshl_add_u32 v{SA_+i}, v7, 3, v5""")
    k("s_waitcnt lgkmcnt(0)")
    k(f"""v_min_f32 v5, v{M0_}, v{o(1)+13}
    v_sub_f32 v6, v5, v{M0_}
    v_sub_f32 v7, v5, v{o(1)+13}
    v_exp_f32 v6, v6
    v_exp_f32 v7, v7
    s_nop 0
    v_mul_f32 v5, v{LR}, v6
    v_fma_f32 v5, v{o(1)+12}, v7, v5
    v_rcp_f32 v5, v5
    s_nop 0
    v_mul_f32 v6, v6, v5
    v_mul_f32 v7, v7, v5""")
    for i in range(12):
        k(f"v_mul_f32 v{o(0)+i}, v{o(0)+i}, v6")
    for i in range(12):
        k(f"v_fma_f32 v{o(0)+i}, v{o(1)+i}, v7, v{o(0)+i}")
    for i in range(6):
        k(f"v_cvt_pk_bf16_f32 v{o(0)+i}, v{o(0)+2*i}, v{o(0)+2*i+1}")
    k(f"buffer_store_dwordx2 {vr(o(0),2)}, v{SA_}, s[28:31], 0 offen")
    k(f"buffer_store_dwordx2 {vr(o(0)+2,2)}, v{SA_+1}, s[28:31], 0 offen")
    k("s_mov_b64 exec, s[40:41]")
    k(f"buffer_store_dwordx2 {vr(o(0)+4,2)}, v{SA_+2}, s[28:31], 0 offen")
    k.label("end")
    k("s_endpgm")
    k.nvgpr = T + 4
    return k

def res_gemm(mode):
    wo = mode == "wo"
    KK = D if wo else F
    NST = KK // 128
    R = 5 if wo else 4
    SB = 4 * 5120
    k = K("wo_kernel" if wo else "down_kernel", 256, 256, R * SB, 128)
    k("s_cmp_ge_u32 s2, 256")
    k(f"s_cbranch_scc1 {k.L('end')}")
    k(f"s_load_dwordx2 s[4:5], s[0:1], {KA_WO if wo else KA_WD}")
    k(f"s_load_dwordx2 s[6:7], s[0:1], {KA_X if wo else KA_OUT}")
    k(f"s_load_dwordx2 s[8:9], s[0:1], {KA_WS}")
    k("""s_and_b32 s10, s2, 7
    s_lshr_b32 s11, s2, 3
    s_lshr_b32 s12, s10, 1
    s_lshl_b32 s12, s12, 3
    s_and_b32 s13, s11, 7
    s_add_u32 s12, s12, s13
    s_and_b32 s13, s10, 1
    s_lshl_b32 s13, s13, 2
    s_lshr_b32 s14, s11, 3
    s_add_u32 s13, s13, s14
    v_lshrrev_b32 v1, 6, v0
    v_and_b32 v0, 63, v0
    s_nop 0
    v_readfirstlane_b32 s14, v1""")
    ACC = 8
    WF = ACC + 20
    AF = WF + 40
    RES = AF + R * 16
    VW = RES + 10
    VA, VT, VRS = 2, 3, 4
    rowb = KK * 2
    k(f"""s_lshl_b32 s15, s12, 6
    s_lshl_b32 s32, s14, 4
    s_add_u32 s15, s15, s32
    v_and_b32 v1, 15, v0
    v_add_u32 v1, s15, v1
    v_lshrrev_b32 v5, 4, v0
    v_mul_u32_u24 v6, {rowb}, v1
    v_lshl_add_u32 v{VA}, v5, 4, v6
    v_mul_u32_u24 v6, 1280, v1
    v_lshl_add_u32 v6, v5, 3, v6
    s_mul_i32 s33, s13, 160
    v_add_u32 v{VRS}, s33, v6""")
    k(f"s_mul_i32 s32, s14, {32*1280}\ns_add_u32 s32, s32, s33")
    for i in range(5):
        k(f"""v_add_u32 v1, {64*i}, v0
        v_mul_u32_u24 v5, 6554, v1
        v_lshrrev_b32 v5, 16, v5
        v_mul_u32_u24 v6, 10, v5
        v_sub_u32 v6, v1, v6
        v_mul_u32_u24 v5, 1280, v5
        v_lshl_add_u32 v5, v6, 4, v5
        v_add_u32 v5, s32, v5""")
        k(f"v_subrev_u32 v{VW+i}, {1024*(i&3)}, v5")
    k(f"""v_lshrrev_b32 v1, 4, v0
    v_bfe_u32 v5, v0, 2, 2
    v_lshl_add_u32 v5, v1, 3, v5
    v_and_b32 v1, 1, v1
    v_lshlrev_b32 v1, 2, v1
    v_xor_b32 v5, v5, v1
    v_xor_b32 v6, 4, v5
    v_mul_u32_u24 v5, 160, v5
    v_mul_u32_u24 v6, 160, v6
    v_and_b32 v1, 3, v0
    v_lshl_add_u32 v{VT}, v1, 3, v5
    v_lshl_add_u32 v7, v1, 3, v6""")
    VT2 = 7
    VTH, VT2H = VW + 5, VW + 6
    k(f"v_add_u32 v{VTH}, {3*SB}, v{VT}\nv_add_u32 v{VT2H}, {3*SB}, v{VT2}")
    k("s_waitcnt lgkmcnt(0)")
    k.srd(16, 8, WS_O if wo else WS_HH, ACT if wo else HH_BYTES)
    k.srd(20, 4, 0, KK * D * 2)
    if wo:
        k.srd(24, 6, 0, ACT)
        k.srd(28, 8, WS_H, ACT)
    else:
        k.srd(24, 8, WS_H, ACT)
        k.srd(28, 6, 0, ACT)
    k("s_mul_i32 s34, s14, 5120")
    for i in range(20): k(f"v_mov_b32 v{ACC+i}, 0")
    af = lambda slot, ks: AF + 16 * slot + 4 * ks
    wf = lambda b, nt: WF + 20 * b + 4 * nt
    def issue(st):
        slot = st % R
        r = [f"s_add_u32 m0, s34, {slot*SB}", f"s_mov_b32 s35, {st*128*1280}"]
        for i in range(4):
            r.append(f"buffer_load_dwordx4 v{VW+i}, s[20:23], s35 offen offset:{1024*i} lds")
        r += [f"s_add_u32 m0, s34, {slot*SB + 4096}", f"s_mov_b32 s36, {st*256}"]
        r.append(f"buffer_load_dwordx4 v{VW+4}, s[20:23], s35 offen lds")
        for ks in range(4):
            r.append(f"buffer_load_dwordx4 {vr(af(slot,ks),4)}, v{VA}, s[16:19], s36 offen offset:{64*ks}")
        return r
    def reads(slot, ks):
        b = ks & 1
        a1, a2, base = (VT, VT2, slot * SB) if slot < 3 else (VTH, VT2H, (slot - 3) * SB)
        r = []
        for nt in range(5):
            off = base + ks * 5120 + nt * 32
            r.append(f"ds_read_b64_tr_b16 {vr(wf(b,nt),2)}, v{a1} offset:{off}")
            r.append(f"ds_read_b64_tr_b16 {vr(wf(b,nt)+2,2)}, v{a2} offset:{off}")
        return r
    def mfmas(slot, ks):
        b = ks & 1
        return [f"v_mfma_f32_16x16x32_bf16 {vr(ACC+4*nt,4)}, {vr(wf(b,nt),4)}, {vr(af(slot,ks),4)}, {vr(ACC+4*nt,4)}"
                for nt in range(5)]
    resl = [f"buffer_load_dwordx2 {vr(RES+2*nt,2)}, v{VRS}, s[24:27], 0 offen offset:{32*nt}" for nt in range(5)]
    order = []
    for st in range(min(R, NST)):
        for x in issue(st): k(x)
        order += [st] * 9
    res_done = False
    if R >= NST:
        for x in resl: k(x)
        order += ["r"] * 5; res_done = True
    for st in range(NST):
        slot = st % R
        last = max(i for i, x in enumerate(order) if x == st)
        k(f"s_waitcnt vmcnt({len(order) - 1 - last})")
        k("s_barrier")
        extra = []
        if st >= 1 and st + R - 1 < NST:
            extra = issue(st + R - 1); order += [st + R - 1] * 9
        elif st >= 1 and not res_done:
            extra = resl; order += ["r"] * 5; res_done = True
        for x in reads(slot, 0): k(x)
        for ks in range(4):
            if ks < 3:
                for x in reads(slot, ks + 1): k(x)
                k("s_waitcnt lgkmcnt(10)")
            else:
                k("s_waitcnt lgkmcnt(0)")
            n = len(extra)
            fill = extra[ks * n // 4:(ks + 1) * n // 4]
            for x in interleave(mfmas(slot, ks), fill): k(x)
    k("s_waitcnt vmcnt(0)")
    k("s_nop 7")
    for nt in range(5):
        a, rr = ACC + 4 * nt, RES + 2 * nt
        k(f"""v_lshlrev_b32 v5, 16, v{rr}
        v_and_b32 v6, 0xffff0000, v{rr}
        v_add_f32 v{a}, v{a}, v5
        v_add_f32 v{a+1}, v{a+1}, v6
        v_lshlrev_b32 v5, 16, v{rr+1}
        v_and_b32 v6, 0xffff0000, v{rr+1}
        v_add_f32 v{a+2}, v{a+2}, v5
        v_add_f32 v{a+3}, v{a+3}, v6
        v_cvt_pk_bf16_f32 v{a}, v{a}, v{a+1}
        v_cvt_pk_bf16_f32 v{a+1}, v{a+2}, v{a+3}
        buffer_store_dwordx2 {vr(a,2)}, v{VRS}, s[28:31], 0 offen offset:{32*nt}""")
    k.label("end")
    k("s_endpgm")
    k.nvgpr = VW + 7
    return k

def main(path):
    ks = [ln_gemm("qkv"), attention(), res_gemm("wo"), ln_gemm("glu"), res_gemm("down")]
    hdr = open(f"cdna_kernels/{NAME}.s.ref").read().split("\n")
    hdr = [h for h in hdr if h.startswith(";") and "@launch" not in h and "Override" not in h and "grid=ceil" not in h]
    out = "\n".join(hdr) + "\n"
    for k in ks:
        out += f"; @launch kernel={k.name} grid=({k.grid},1,1) block=({k.block},1,1) lds={k.lds}\n"
    out += '.amdgcn_target "amdgcn-amd-amdhsa--gfx950"\n.text\n'
    for k in ks: out += k.text()
    out += '.section .rodata,"a"\n'
    for k in ks: out += k.desc()
    open(path, "w").write(out)
    for k in ks: print(k.name, "vgpr", k.nvgpr, "lds", k.lds, "instrs", len(k.l))

if __name__ == "__main__":
    main(sys.argv[1] if len(sys.argv) > 1 else f"cdna_kernels/{NAME}.s")
```
